```python
import torch

def _softmax(x, axis=-1):
    return torch.softmax(x, dim=axis)
def _gelu(x):
    return torch.nn.functional.gelu(x, approximate="tanh")
def _silu(x):
    return torch.nn.functional.silu(x)
def _sigmoid(x):
    return torch.sigmoid(x)
def _layernorm(x, axis=-1, eps=1e-5):
    m = x.mean(dim=axis, keepdim=True)
    v = x.var(dim=axis, keepdim=True, unbiased=False)
    return (x - m) / torch.sqrt(v + eps)
def _scatter_add(tgt, idx, src, axis=0):
    return tgt.clone().index_add_(axis, idx, src)
def _segment_sum(src, seg, n):
    out = torch.zeros((n,) + src.shape[1:], dtype=src.dtype)
    return out.index_add_(0, seg, src)
def _pad(x, pw):
    flat = tuple(v for pair in reversed(pw) for v in pair)
    return torch.nn.functional.pad(x, flat)

kernel_name = 'sequential_preLN__grouped_kv_mqa__dense_activation_squared_relu__prompt'

def setup_inputs():

    _w = (lambda a: (lambda t: t.to(torch.bfloat16) if t.is_floating_point() else t)(torch.as_tensor(a)))
    def _A_setup():
        B, S, D, H = 1, 2048, 576, 32
        Dh = D // H
        return {
            "x": _w((lambda *s: torch.randn(*s, dtype=torch.bfloat16) * 0.05)(B, S, D)),
            "wq": _w((lambda *s: torch.randn(*s, dtype=torch.bfloat16) * 0.05)(D, H * Dh)),
            "wk": _w((lambda *s: torch.randn(*s, dtype=torch.bfloat16) * 0.05)(D, Dh)),
            "wv": _w((lambda *s: torch.randn(*s, dtype=torch.bfloat16) * 0.05)(D, Dh)),
            "wo": _w((lambda *s: torch.randn(*s, dtype=torch.bfloat16) * 0.05)(H * Dh, D)),
        }
    _A_in = _A_setup()

    def _B_setup():
        B, S, D, F = 1, 2048, 576, 4608
        return {
            "x": _w((lambda *s: torch.randn(*s, dtype=torch.bfloat16) * 0.05)(B, S, D)),
            "w1": _w((lambda *s: torch.randn(*s, dtype=torch.bfloat16) * 0.05)(D, F)),
            "b1": _w((lambda *s: torch.randn(*s, dtype=torch.bfloat16) * 0.4)(F)),
            "w2": _w((lambda *s: torch.randn(*s, dtype=torch.bfloat16) * 0.05)(F, D)),
            "b2": _w((lambda *s: torch.randn(*s, dtype=torch.bfloat16) * 3.2)(D)),
        }
    _B_in = _B_setup()

    return {
        "A_x": _A_in["x"],
        "A_wq": _A_in["wq"],
        "A_wk": _A_in["wk"],
        "A_wv": _A_in["wv"],
        "A_wo": _A_in["wo"],
        "B_x": _B_in["x"],
        "B_w1": _B_in["w1"],
        "B_b1": _B_in["b1"],
        "B_w2": _B_in["w2"],
        "B_b2": _B_in["b2"],
    }

def reference(A_x, A_wq, A_wk, A_wv, A_wo, B_x, B_w1, B_b1, B_w2, B_b2):
    def _A_ref(x, wq, wk, wv, wo):
        B, S, D = x.shape
        H = 32
        Dh = D // H
        q = (lambda x, *d: x.permute(*d))((x @ wq).reshape(B, S, H, Dh), 0, 2, 1, 3)
        k = x @ wk
        v = x @ wv
        scores = torch.einsum("bhqd,bkd->bhqk", q, k) * (Dh ** -0.5)
        p = _softmax(scores, axis=-1)
        o = torch.einsum("bhqk,bkd->bhqd", p, v)
        return (lambda x, *d: x.permute(*d))(o, 0, 2, 1, 3).reshape(B, S, H * Dh) @ wo

    def _B_ref(x, w1, b1, w2, b2):
        h = torch.einsum("bsd,df->bsf", x, w1) + b1
        zero = torch.zeros_like(h)
        r = torch.where(h > zero, h, zero)
        h = r * r
        out = torch.einsum("bsf,fd->bsd", h, w2) + b2
        return out

    x = A_x
    h = x + _A_ref(_layernorm(x, axis=-1), A_wq, A_wk, A_wv, A_wo)
    h2 = h + _B_ref(_layernorm(h, axis=-1), B_w1, B_b1, B_w2, B_b2)
    return h2
```

```python
import re

class Kern:
    def __init__(self, name, vgpr, agpr=0, sgpr=96):
        self.name = name; self.L = []; self.vgpr = vgpr; self.agpr = agpr; self.sgpr = sgpr
    def __call__(self, s):
        for ln in s.strip("\n").split("\n"):
            ln = ln.strip()
            if ln: self.L.append(ln)
    def lab(self, l): self.L.append(l + ":")
    def nop(self, n):
        while n > 0:
            k = min(n, 16); self.L.append(f"s_nop {k-1}"); n -= k
    def text(self):
        acc = (self.vgpr + 3) // 4 * 4
        nfv = acc + self.agpr if self.agpr else self.vgpr
        o = [".text", f".globl {self.name}", ".p2align 8", f".type {self.name},@function", f"{self.name}:"]
        for ln in self.L:
            o.append(ln if ln.endswith(":") or ln.startswith(".") else "    " + ln)
        o += ['.section .rodata,"a"', ".p2align 6", f".amdhsa_kernel {self.name}",
              f"  .amdhsa_next_free_vgpr {nfv}", f"  .amdhsa_next_free_sgpr {self.sgpr}",
              f"  .amdhsa_accum_offset {acc}", "  .amdhsa_group_segment_fixed_size 0",
              "  .amdhsa_kernarg_size 104", "  .amdhsa_user_sgpr_count 2",
              "  .amdhsa_user_sgpr_kernarg_segment_ptr 1", "  .amdhsa_system_sgpr_workgroup_id_x 1",
              ".end_amdhsa_kernel"]
        return "\n".join(o) + "\n"

def vr(b, n=1, f="v"):
    return f"{f}{b}" if n == 1 else f"{f}[{b}:{b+n-1}]"
def ar(b, n=1): return vr(b, n, "a")
def sr(b, n=1): return vr(b, n, "s")

_REG = re.compile(r"^-?(?:abs\()?\|?([vas])(?:(\d+)|\[(\d+):(\d+)\])\|?\)?$")
def regs(op):
    op = op.strip()
    if op in ("vcc",): return {("s", 106), ("s", 107)}
    if op == "vcc_lo": return {("s", 106)}
    if op == "vcc_hi": return {("s", 107)}
    if op == "exec": return {("s", 126), ("s", 127)}
    if op == "m0": return {("s", 124)}
    m = _REG.match(op)
    if not m: return set()
    f = m.group(1)
    if m.group(2) is not None: return {(f, int(m.group(2)))}
    return {(f, i) for i in range(int(m.group(3)), int(m.group(4)) + 1)}

TRANS = ("v_exp_f32", "v_log_f32", "v_rcp_f32", "v_rsq_f32", "v_sqrt_f32", "v_sin_f32", "v_cos_f32")
class Ins:
    def __init__(self, text):
        self.text = text
        t = text.split(";")[0].strip()
        parts = t.split(None, 1)
        self.op = parts[0]
        rest = parts[1] if len(parts) > 1 else ""
        ops = [o.strip() for o in rest.split(",")] if rest else []
        self.mods = ""
        if ops:
            lp = ops[-1].split(None, 1)
        ops = []; cur = ""; d = 0
        for ch in rest:
            if ch in "[(": d += 1
            if ch in "])": d -= 1
            if ch == "," and d == 0: ops.append(cur.strip()); cur = ""
            else: cur += ch
        if cur.strip(): ops.append(cur.strip())
        if ops:
            lp = ops[-1].split(None, 1)
            ops[-1] = lp[0]; self.mods = lp[1] if len(lp) > 1 else ""
        self.ops = ops
        op = self.op
        self.w = set(); self.r = set()
        self.kind = "other"
        self.mfma = op.startswith("v_mfma")
        R = [regs(o) for o in ops]
        if self.mfma:
            self.kind = "mfma"; self.w = R[0]; self.A = R[1]; self.B = R[2]; self.C = R[3]; self.r = R[1] | R[2] | R[3]
            self.passes = 4 if "16x16" in op else 8
        elif op.startswith("v_"):
            self.kind = "valu"
            if op.startswith("v_cmp"):
                self.w = R[0]; self.r = set().union(*R[1:])
            elif op.startswith("v_permlane") :
                self.w = R[0] | R[1]; self.r = R[0] | R[1]
            elif op in ("v_nop",):
                pass
            elif op.startswith(("v_add_co", "v_sub_co", "v_addc_co", "v_subb_co")):
                self.w = R[0] | R[1]; self.r = set().union(*R[2:])
            else:
                self.w = R[0]; self.r = set().union(*R[1:]) if len(R) > 1 else set()
                if op.startswith(("v_fmac", "v_dot2c", "v_writelane")) or "_dpp" in op: self.r |= R[0]
                if op.startswith("v_cndmask") and len(ops) == 3: self.r |= regs("vcc")
        elif op.startswith("ds_"):
            self.kind = "ds"
            if op.startswith(("ds_read", "ds_bpermute", "ds_permute", "ds_swizzle")):
                self.w = R[0]; self.r = set().union(*R[1:])
            else:
                self.r = set().union(*R)
        elif op.startswith(("buffer_", "global_")):
            self.kind = "vmem"
            self.lds = bool(re.search(r"\blds\b", self.mods)) or "load_lds" in op
            if op in ("buffer_wbl2", "buffer_inv"):
                pass
            elif "load" in op and not self.lds:
                self.w = R[0]; self.r = set().union(*R[1:])
            elif "atomic" in op and "sc0" in self.mods:
                self.w = R[0]; self.r = set().union(*R)
            else:
                self.r = set().union(*R)
            if self.lds: self.r |= regs("m0")
            self.store = "store" in op
            self.wide = self.store and ("x4" in op or "x3" in op)
            self.data = R[0] if (self.store and op.startswith("buffer_")) else set()
        elif op.startswith(("s_load", "s_memtime", "s_memrealtime", "s_buffer_load")):
            self.kind = "smem"; self.w = R[0]; self.r = set().union(*R[1:]) if len(R) > 1 else set()
        elif op.startswith("s_"):
            self.kind = "salu"
            if op.startswith(("s_cmp", "s_cbranch", "s_branch", "s_waitcnt", "s_barrier", "s_nop", "s_endpgm", "s_setprio", "s_sleep", "s_bitcmp")):
                self.r = set().union(*R) if R else set()
            elif op.startswith("s_set_gpr_idx_on"):
                self.r = R[0]; self.w = regs("m0")
            elif op.startswith("s_set_gpr_idx_off"):
                pass
            else:
                self.w = R[0]; self.r = set().union(*R[1:]) if len(R) > 1 else set()
                if "saveexec" in op: self.w |= regs("exec")
                if op.startswith(("s_addk", "s_mulk")): self.r |= R[0]
        self.ws = 1
        if op == "s_nop": self.ws = int(ops[0], 0) + 1

def check(k, verbose=True):
    L = k.L
    labels = {ln[:-1]: i for i, ln in enumerate(L) if ln.endswith(":")}
    trace = []
    taken = set()
    i = 0
    while i < len(L):
        ln = L[i]
        if ln.endswith(":") or ln.startswith(".") or ln.startswith(";"):
            i += 1; continue
        ins = Ins(ln); ins.idx = i
        trace.append(ins)
        if ins.op.startswith(("s_cbranch", "s_branch")):
            tgt = labels.get(ins.ops[0])
            if tgt is not None and tgt <= i and i not in taken and "nocheck" not in ln:
                taken.add(i); i = tgt; continue
            if ins.op == "s_branch" and tgt is not None and tgt > i:
                ins.barrier_reset = True
        i += 1
    probs = []
    def P(a, b, why): probs.append(f"[{k.name}] {why}: '{a.text}' (line {a.idx}) -> '{b.text}' (line {b.idx})")
    n = len(trace)
    for j, b in enumerate(trace):
        dist = 0
        for i in range(j - 1, max(-1, j - 24), -1):
            a = trace[i]
            isv = lambda s: {x for x in s if x[0] in "va"}
            iss = lambda s: {x for x in s if x[0] == "s"}
            if a.kind == "valu":
                wv = isv(a.w); wsg = iss(a.w)
                if b.kind == "mfma" and wv & b.r and dist < 2: P(a, b, f"VALU->MFMA needs 2 (has {dist})")
                if a.op.startswith(TRANS) and b.kind == "valu" and not b.op.startswith(TRANS) and wv & b.r and dist < 1: P(a, b, "trans->valu needs 1")
                if a.op.startswith(TRANS) and b.kind in ("vmem", "ds") and wv & b.r and dist < 1: P(a, b, "trans->mem needs 1(?)")
                if b.op.startswith(("v_readlane", "v_readfirstlane")) and wv & b.r and dist < 1: P(a, b, "valu->readlane needs 1")
                if b.op.startswith("v_permlane") and wv & b.r and dist < 2: P(a, b, "valu->permlane needs 2")
                if "_dpp" in b.op and wv & b.r and dist < 2: P(a, b, "valu->dpp needs 2")
                if b.kind == "valu" and wsg & b.r and dist < 2: P(a, b, "valu sgpr->valu needs 2")
                if b.kind == "vmem" and wsg & b.r and dist < 5: P(a, b, "valu sgpr->vmem needs 5")
                if a.op.startswith("v_dot") and b.kind in ("valu", "mfma", "vmem", "ds") and wv & (b.r | b.w) and dist < 3:
                    if not (b.op == a.op and not (wv & (regs(b.ops[1]) | regs(b.ops[2])))): P(a, b, "dot->other needs 3")
            if a.kind == "mfma":
                need = 12 if a.passes == 8 else 8
                if b.kind == "valu" and a.w & (b.r | b.w) and dist < need: P(a, b, f"MFMA D->VALU needs {need} (has {dist})")
                if b.kind in ("vmem", "ds") and a.w & (b.r | b.w) and dist < need: P(a, b, f"MFMA D->mem needs {need} (has {dist})")
                if b.kind == "mfma":
                    if a.w & (b.A | b.B) and dist < need: P(a, b, f"MFMA D->A/B needs {need} (has {dist})")
                    if a.w & b.C and not (a.w == b.C and a.passes == b.passes) and dist < need - 2: P(a, b, "MFMA D->C overlap")
                    if a.w & b.w and not (a.w == b.C) and dist < need: P(a, b, f"MFMA D->D WAW (?) needs {need} (has {dist})")
                if b.kind == "valu" and a.C & b.w and dist < (7 if a.passes == 8 else 3): P(a, b, "MFMA C read->VALU write")
            if a.kind == "salu" and ("s", 124) in a.w and b.kind == "vmem" and b.lds and dist < 1: P(a, b, "m0->lds dma needs 1")
            if a.kind == "salu" and a.op.startswith("s_set_gpr_idx_on") and b.kind == "valu" and dist < 0: pass
            if a.kind == "vmem" and a.wide and a.data & b.w and dist < (2 if b.kind in ("valu", "mfma") else 1): P(a, b, "wide store data WAR")
            dist += a.ws
            if dist > 20: break
    vm = []; lg = []
    for b in trace:
        if b.op == "s_waitcnt":
            t = b.text
            m = re.search(r"vmcnt\((\d+)\)", t)
            if m:
                nn = int(m.group(1))
                while len(vm) > nn: vm.pop(0)
            m = re.search(r"lgkmcnt\((\d+)\)", t)
            if m:
                nn = int(m.group(1))
                if any(x.kind == "smem" for x in lg):
                    if nn == 0: lg = []
                else:
                    while len(lg) > nn: lg.pop(0)
            continue
        m = re.search(r"need=([\w,]+)", b.text)
        if m:
            for tag in m.group(1).split(","):
                for a in vm:
                    if re.search(r"dma=%s\b" % tag, a.text): P(a, b, f"DMA {tag} may be outstanding at barrier")
        if b.op == "s_barrier" and "ldsok" not in b.text:
            for a in lg:
                if a.op.startswith("ds_write"): P(a, b, "ds_write outstanding at barrier")
        touch = b.r | b.w
        for a in vm + lg:
            if a.w & touch and "nowait" not in b.text and "nowait" not in a.text:
                if a.kind == b.kind and not (a.w & b.r) and a.kind != "smem": continue
                P(a, b, "use of pending load result")
        if b.kind == "vmem":
            vm.append(b)
            if len(vm) > 63: probs.append(f"[{k.name}] vmcnt overflow at '{b.text}' line {b.idx}")
        if b.kind in ("ds", "smem"):
            lg.append(b)
            if len(lg) > 15 and verbose and False: probs.append(f"[{k.name}] lgkmcnt >15 at line {b.idx}")
        if b.op == "s_endpgm": vm = []; lg = []
    for b in trace:
        for f, i in b.r | b.w:
            if f == "v" and i >= k.vgpr: probs.append(f"[{k.name}] v{i} >= vgpr {k.vgpr}: {b.text}")
            if f == "a" and i >= k.agpr: probs.append(f"[{k.name}] a{i} >= agpr {k.agpr}: {b.text}")
            if f == "s" and k.sgpr <= i < 106: probs.append(f"[{k.name}] s{i} >= sgpr {k.sgpr}: {b.text}")
    seen = set(); out = []
    for p in probs:
        if p not in seen: seen.add(p); out.append(p)
    return out
```

```python
import sys, math
sys.path.insert(0, "work")
from asmlib import *

NAME = "sequential_preLN__grouped_kv_mqa__dense_activation_squared_relu__prompt"
ACT = 2048 * 576 * 2
WS_Q = 0
WS_KV = ACT
KVT = 2368
WS_KMAX = WS_KV + 152 * 1024
WS_O = 0x280000
WS_H = WS_O + ACT
WS_P = WS_H + ACT
WS_END = WS_P + 8 * ACT
WS_STAMP = 200 << 20
FMT = "0x00020000"
EPS = 1e-5
import struct
def f32(x): return "0x%08x" % struct.unpack("<I", struct.pack("<f", x))[0]
QSCALE = math.log2(math.e) / math.sqrt(18.0)

STAMPS = False

def stamp_begin(k):
    if STAMPS: k("s_memrealtime s[90:91]")
def stamp_end(k, idx, srd):
    if not STAMPS: return
    k(f"""
    s_waitcnt vmcnt(0) lgkmcnt(0)
    s_memrealtime s[92:93]
    s_waitcnt lgkmcnt(0)
    s_mov_b64 exec, 1
    v_mov_b32 v2, s90
    v_mov_b32 v3, s92
    v_lshrrev_b32 v1, 6, v0
    s_lshl_b32 s3, s2, 4
    v_add_u32 v1, s3, v1
    v_lshlrev_b32 v1, 3, v1
    v_add_u32 v1, {WS_STAMP + idx*0x20000}, v1
    s_mov_b32 s{srd+2}, 0x10000000
    buffer_store_dwordx2 v[2:3], v1, s[{srd}:{srd+3}], 0 offen
    """)

def srd(k, d, lo, hi, size):
    k(f"s_mov_b32 s{d}, s{lo}")
    k(f"s_mov_b32 s{d+1}, s{hi}")
    k(f"s_mov_b32 s{d+2}, {size}")
    k(f"s_mov_b32 s{d+3}, {FMT}")

def gemm3(mode):
    qkv = mode == "qkv"
    nsl = 7 if qkv else 6
    k = Kern("qkv_kernel" if qkv else "wo_kernel", vgpr=192, sgpr=96)
    X = 32
    ACC = 104
    AF = 152
    T = 8
    STAT = 110592
    RED = STAT + 1024
    k(f"s_cmp_ge_u32 s2, {32*nsl}")
    k("s_cbranch_scc1 L_%s_end" % mode)
    stamp_begin(k)
    if qkv:
        k("s_load_dwordx4 s[4:7], s[0:1], 0")
        k("s_load_dwordx4 s[28:31], s[0:1], 16")
    else:
        k("s_load_dwordx2 s[4:5], s[0:1], 0")
        k("s_load_dwordx2 s[6:7], s[0:1], 32")
    k("s_load_dwordx2 s[32:33], s[0:1], 96")
    k("s_and_b32 s34, s2, 7")
    k("s_lshr_b32 s35, s2, 3")
    if qkv:
        k("s_mul_i32 s36, s35, 37"); k("s_lshr_b32 s36, s36, 8")
    else:
        k("s_mul_i32 s36, s35, 43"); k("s_lshr_b32 s36, s36, 8")
    k(f"s_mul_i32 s37, s36, {nsl}")
    k("s_sub_u32 s37, s35, s37")
    k("s_lshl_b32 s36, s36, 3")
    k("s_add_u32 s36, s36, s34")
    k("v_lshrrev_b32 v1, 6, v0")
    k("v_and_b32 v2, 63, v0")
    k("v_readfirstlane_b32 s38, v1")
    k("v_and_b32 v3, 31, v2")
    k("v_lshrrev_b32 v4, 5, v2")
    k("s_and_b32 s39, s38, 1")
    k("s_lshr_b32 s40, s38, 1")
    k("s_lshl_b32 s45, s36, 1")
    k("s_add_u32 s45, s45, s39")
    if qkv:
        k("s_mov_b32 s46, 1152")
        k("v_mul_lo_u32 v5, v3, s46")
        k("v_lshl_add_u32 v5, v4, 4, v5")
        k("s_mul_i32 s47, s45, 36864")
        k("s_mul_i32 s48, s40, 576")
        k("s_add_u32 s47, s47, s48")
    else:
        k("v_lshlrev_b32 v5, 4, v2")
        k("s_mul_i32 s47, s45, 36864")
        k(f"s_add_u32 s47, s47, {WS_O}")
        k("s_lshl_b32 s48, s40, 14")
        k("s_add_u32 s49, s47, s48")
        k("s_lshl_b32 s48, s40, 11")
        k("s_add_u32 s50, s47, s48")
        k("s_add_u32 s50, s50, 32768")
    k("s_waitcnt lgkmcnt(0)")
    srd(k, 8, 4, 5, ACT)
    srd(k, 24, 32, 33, WS_END)
    korder = None
    if qkv:
        for s in range(18):
            k(f"buffer_load_dwordx4 {vr(X+4*s,4)}, v5, s[8:11], s47 offen offset:{32*s}")
    else:
        for s in range(16):
            if s % 4 == 0 and s: k("s_add_u32 s49, s49, 4096")
            k(f"buffer_load_dwordx4 {vr(X+4*s,4)}, v5, s[24:27], s49 offen offset:{1024*(s%4)}")
        for s in range(2):
            k(f"buffer_load_dwordx4 {vr(X+64+4*s,4)}, v5, s[24:27], s50 offen offset:{1024*s}")
    WB = 576 * 576 * 2
    k("s_mul_i32 s51, s37, 192")
    for t in range(3):
        d = 12 + 4 * t
        k(f"s_add_u32 s52, s51, {64*t}")
        k(f"s_add_u32 s{d}, s6, s52")
        k(f"s_addc_u32 s{d+1}, s7, 0")
        k(f"s_sub_u32 s{d+2}, {WB}, s52")
        k(f"s_mov_b32 s{d+3}, {FMT}")
    k("s_mov_b32 s41, 1152")
    if qkv:
        k("s_cmp_eq_u32 s37, 6")
        k("s_cbranch_scc0 L_qkv_notkv")
        k("s_mov_b32 s12, s28"); k("s_mov_b32 s13, s29"); k(f"s_mov_b32 s14, {576*36}")
        k("s_mov_b32 s16, s30"); k("s_mov_b32 s17, s31"); k(f"s_mov_b32 s18, {576*36}")
        k("s_mov_b32 s20, s30"); k("s_mov_b32 s21, s31"); k(f"s_mov_b32 s22, {576*36}")
        k("s_mov_b32 s41, 36")
        k.lab("L_qkv_notkv")
    k("s_lshl_b32 s42, s41, 4")
    k("v_lshrrev_b32 v6, 2, v2")
    k("v_mul_lo_u32 v6, v6, s41")
    k("v_and_b32 v7, 3, v2")
    k("v_lshl_add_u32 v6, v7, 4, v6")
    k("s_mul_i32 s53, s40, 18")
    k("s_mul_i32 s54, s39, 3")
    k("s_add_u32 s53, s53, s54")
    k("s_mul_i32 s43, s53, s42")
    k("s_lshl_b32 s44, s53, 10")
    k("s_mul_i32 s55, s42, 4")
    for st in range(3):
        for e in range(3):
            for t in range(3):
                k(f"s_add_u32 m0, s44, {t*36864 + (6*st+e)*1024}")
                k("s_nop 0")
                k(f"buffer_load_dwordx4 v6, s[{12+4*t}:{15+4*t}], s43 offen lds")
            if e < 2: k("s_add_u32 s43, s43, s42")
            elif st < 2: k("s_add_u32 s43, s43, s55")
    nres = 0
    if not qkv:
        k("s_mov_b32 s46, 1152")
        k("v_mul_lo_u32 v7, v3, s46")
        k("v_lshl_add_u32 v7, v4, 3, v7")
        k("s_mul_i32 s56, s45, 36864")
        k("s_add_u32 s56, s56, s51")
        k("s_lshl_b32 s57, s40, 5")
        k("s_add_u32 s56, s56, s57")
        for t in range(3):
            for q in range(2):
                k(f"buffer_load_dwordx2 {vr(T+4*t+2*q,2)}, v7, s[8:11], s56 offen offset:{64*t+16*q}")
        nres = 6
    k("v_bfe_u32 v20, v2, 4, 1")
    k("v_bfe_u32 v21, v2, 2, 2")
    k("v_and_b32 v22, 3, v2")
    k("v_lshlrev_b32 v22, 3, v22")
    k("v_lshl_add_u32 v22, v20, 5, v22")
    k("s_mul_i32 s57, s40, 18432")
    k("v_add_u32 v22, s57, v22")
    if qkv:
        k("v_lshl_add_u32 v23, v4, 3, v21")
        k("v_lshl_add_u32 v24, v23, 6, v22")
        k("v_add_u32 v25, 73728, v24")
    else:
        k("v_lshl_add_u32 v23, v4, 2, v21")
        k("v_lshl_add_u32 v24, v23, 6, v22")
        k("v_add_u32 v25, 73728, v24")
        k("v_lshrrev_b32 v23, 1, v21")
        k("v_lshl_add_u32 v23, v4, 2, v23")
        k("v_mul_u32_u24 v23, 18, v23")
        k("v_and_b32 v26, 1, v21")
        k("v_add3_u32 v23, v23, v26, 16")
        k("v_lshl_add_u32 v26, v23, 6, v22")
        k("v_add_u32 v27, 73728, v26")
    if qkv:
        k("v_mov_b32 v8, 0"); k("v_mov_b32 v9, 0"); k("v_mov_b32 v10, 0"); k("v_mov_b32 v11, 0")
        k("s_mov_b32 s58, 0x3f803f80")
        for s in range(18):
            k(f"s_waitcnt vmcnt({27 + 17 - s})")
            for j in range(4):
                r = X + 4 * s + j
                k(f"v_dot2c_f32_bf16 v{8 + (j&1)}, s58, v{r}")
                k(f"v_dot2c_f32_bf16 v{10 + (j&1)}, v{r}, v{r}")
        k.nop(3)
        k("v_add_f32 v8, v8, v9")
        k("v_add_f32 v10, v10, v11")
        k("v_mov_b32 v9, v8"); k("v_mov_b32 v11, v10")
        k.nop(2)
        k("v_permlane32_swap_b32 v8, v9")
        k("v_permlane32_swap_b32 v10, v11")
        k("v_add_f32 v8, v8, v9")
        k("v_add_f32 v9, v10, v11")
        k("s_lshl_b32 s59, s38, 8")
        k(f"s_add_u32 s59, s59, {STAT}")
        k("v_lshl_add_u32 v12, v3, 3, s59")
        k("ds_write_b64 v12, v[8:9]")
        k("v_xor_b32 v12, 512, v12")
    k(f"s_waitcnt vmcnt({18 + nres}) lgkmcnt(0)")
    k("s_barrier")
    if qkv:
        k("ds_read_b64 v[10:11], v12")
        k("s_waitcnt lgkmcnt(0)")
        k("v_add_f32 v8, v8, v10")
        k("v_add_f32 v9, v9, v11")
        k(f"v_mul_f32 v8, {f32(1/576)}, v8")
        k(f"v_mul_f32 v9, {f32(1/576)}, v9")
        k("v_fma_f32 v9, -v8, v8, v9")
        k("v_max_f32 v9, 0, v9")
        k(f"v_add_f32 v9, {f32(EPS)}, v9")
        k("v_rsq_f32 v10, v9")
        k("s_nop 0")
        k("v_mul_f32 v12, v8, v10")
        k("v_sub_f32 v12, 0, v12")
        k("s_mov_b32 s58, 0xffff0000")
    steps = []
    if qkv:
        for s in range(18):
            steps.append((s, s // 6, 24, s * 1024, s * 1024 + 256))
    else:
        for hd in range(16):
            st = 0 if hd < 5 else (1 if hd < 10 else 2)
            steps.append((hd, st, 24, hd * 1152, hd * 1152 + 512))
            if hd == 9: steps.append((16, 1, 26, 0, 2304))
            if hd == 15: steps.append((17, 2, 26, 9216, 9216 + 2304))
    def reads(i):
        fr, st, ab, i0, i1 = steps[i]
        b = AF + 12 * (i % 3)
        for t in range(3):
            a = ab + (1 if t == 2 else 0)
            o = 36864 if t == 1 else 0
            k(f"ds_read_b64_tr_b16 {vr(b+4*t,2)}, v{a} offset:{o+i0}")
            k(f"ds_read_b64_tr_b16 {vr(b+4*t+2,2)}, v{a} offset:{o+i1}")
    def norm(fr):
        o = []
        for j in range(4):
            r = X + 4 * fr + j
            tt = 14 + 2 * (j & 1)
            o.append(f"v_lshlrev_b32 v{tt}, 16, v{r}")
            o.append(f"v_and_b32 v{tt+1}, s58, v{r}")
            o.append(f"v_pk_fma_f32 {vr(tt,2)}, {vr(tt,2)}, v[10:11], v[12:13] op_sel_hi:[1,0,0]")
            o.append(f"v_cvt_pk_bf16_f32 v{r}, v{tt}, v{tt+1}")
        return o
    n = len(steps)
    cur_stage = 0
    issued = 0
    def can_issue(i): return i < n and steps[i][1] <= cur_stage
    for i in range(n):
        fr, st = steps[i][0], steps[i][1]
        if st > cur_stage:
            cur_stage = st
            k(f"s_waitcnt vmcnt({(2-st)*9 + nres})")
            k("s_barrier")
        while issued < min(i + 2, n) and can_issue(issued):
            reads(issued); issued += 1
        if qkv and i == 0:
            for o in norm(fr): k(o)
        pend = issued - i - 1
        k(f"s_waitcnt lgkmcnt({6*pend})")
        if qkv: k("s_nop 0")
        b = AF + 12 * (i % 3)
        nx = norm(steps[i+1][0]) if (qkv and i + 1 < n) else []
        for t in range(3):
            c = "0" if i == 0 else vr(ACC+16*t, 16)
            k(f"v_mfma_f32_32x32x16_bf16 {vr(ACC+16*t,16)}, {vr(b+4*t,4)}, {vr(X+4*fr,4)}, {c}")
            for o in nx[[0,5,10][t]:[5,10,16][t]]: k(o)
    k("s_mul_i32 s59, s38, 6144")
    k(f"s_add_u32 s59, s59, {RED}")
    k("v_lshl_add_u32 v20, v2, 4, s59")
    k("s_xor_b32 s60, s38, 2")
    k("s_mul_i32 s60, s60, 6144")
    k(f"s_add_u32 s60, s60, {RED}")
    k("v_lshl_add_u32 v21, v2, 4, s60")
    k.nop(8)
    k("s_cmp_eq_u32 s40, 0")
    k(f"s_cbranch_scc0 L_{mode}_w1")
    for t in range(3):
        for q in range(2):
            k(f"ds_write_b128 v20, {vr(ACC+16*t+8+4*q,4)} offset:{(2*t+q)*1024}")
    k(f"s_branch L_{mode}_w2")
    k.lab(f"L_{mode}_w1")
    for t in range(3):
        for q in range(2):
            k(f"ds_write_b128 v20, {vr(ACC+16*t+4*q,4)} offset:{(2*t+q)*1024}")
    k.lab(f"L_{mode}_w2")
    k("s_waitcnt lgkmcnt(0)")
    k("s_barrier")
    R = X
    for t in range(3):
        for q in range(2):
            k(f"ds_read_b128 {vr(R+8*t+4*q,4)}, v21 offset:{(2*t+q)*1024}")
    k("s_waitcnt lgkmcnt(0)")
    k("s_cmp_eq_u32 s40, 0")
    k(f"s_cbranch_scc0 L_{mode}_a1")
    for t in range(3):
        for j in range(8): k(f"v_add_f32 v{R+8*t+j}, v{R+8*t+j}, v{ACC+16*t+j}")
    k(f"s_branch L_{mode}_a2")
    k.lab(f"L_{mode}_a1")
    for t in range(3):
        for j in range(8): k(f"v_add_f32 v{R+8*t+j}, v{R+8*t+j}, v{ACC+16*t+8+j}")
    k.lab(f"L_{mode}_a2")
    P = X + 24
    if not qkv:
        k("s_waitcnt vmcnt(0)")
        k("s_mov_b32 s58, 0xffff0000")
        for t in range(3):
            for j in range(4):
                xr = T + 4 * t + j
                k(f"v_lshlrev_b32 v20, 16, v{xr}")
                k(f"v_and_b32 v21, s58, v{xr}")
                k(f"v_add_f32 v{R+8*t+2*j}, v{R+8*t+2*j}, v20")
                k(f"v_add_f32 v{R+8*t+2*j+1}, v{R+8*t+2*j+1}, v21")
                k(f"v_cvt_pk_bf16_f32 v{P+4*t+j}, v{R+8*t+2*j}, v{R+8*t+2*j+1}")
        k("s_mul_i32 s56, s45, 36864")
        k("s_mul_i32 s57, s37, 6144")
        k("s_add_u32 s56, s56, s57")
        k("s_lshl_b32 s57, s40, 10")
        k("s_add_u32 s56, s56, s57")
        k(f"s_add_u32 s56, s56, {WS_H}")
        k("s_add_u32 s57, s56, 4096")
        k(f"buffer_store_dwordx4 {vr(P,4)}, v5, s[24:27], s56 offen")
        k(f"buffer_store_dwordx4 {vr(P+4,4)}, v5, s[24:27], s56 offen offset:2048")
        k(f"buffer_store_dwordx4 {vr(P+8,4)}, v5, s[24:27], s57 offen")
    else:
        k("s_cmp_eq_u32 s37, 6")
        k("s_cbranch_scc1 L_qkv_kv")
        k(f"s_mov_b32 s58, {f32(QSCALE)}")
        for j in range(24): k(f"v_mul_f32 v{R+j}, s58, v{R+j}")
        for j in range(12): k(f"v_cvt_pk_bf16_f32 v{P+j}, v{R+2*j}, v{R+2*j+1}")
        k.nop(2)
        for t in range(3):
            k(f"v_permlane32_swap_b32 v{P+4*t}, v{P+4*t+2}")
            k(f"v_permlane32_swap_b32 v{P+4*t+1}, v{P+4*t+3}")
        k("s_mul_i32 s56, s45, 36864")
        k("s_add_u32 s56, s56, s51")
        k("s_lshl_b32 s57, s40, 5")
        k("s_add_u32 s56, s56, s57")
        for t in range(3):
            k(f"buffer_store_dwordx4 {vr(P+4*t,4)}, v5, s[24:27], s56 offen offset:{64*t}")
        k("s_branch L_qkv_done")
        k.lab("L_qkv_kv")
        for j in range(8): k(f"v_cvt_pk_bf16_f32 v{P+j}, v{R+2*j}, v{R+2*j+1}")
        k(f"s_mul_i32 s56, s45, {KVT}")
        k(f"s_add_u32 s56, s56, {WS_KV}")
        k("v_lshrrev_b32 v20, 4, v3")
        k("v_mul_u32_u24 v20, 608, v20")
        k("v_bfe_u32 v21, v3, 2, 1")
        k("v_mul_u32_u24 v21, 304, v21")
        k("v_add_u32 v20, v20, v21")
        k("v_and_b32 v21, 3, v3")
        k("v_lshl_add_u32 v20, v21, 1, v20")
        k("v_bfe_u32 v21, v3, 3, 1")
        k("v_lshl_add_u32 v20, v21, 3, v20")
        k("v_lshl_add_u32 v20, v4, 6, v20")
        k("v_add_u32 v20, 1152, v20")
        k("v_mov_b32 v8, 0")
        k("s_lshl_b32 s57, s45, 3")
        k("s_lshl_b32 s59, s40, 2")
        k("s_add_u32 s57, s57, s59")
        k(f"s_add_u32 s57, s57, {WS_KMAX}")
        k("s_cmp_eq_u32 s40, 0")
        k("s_cbranch_scc0 L_qkv_kv1")
        for ip in range(2):
            for r in range(4):
                reg = P + 4 + 2 * ip + r // 2
                op = "buffer_store_short" if r % 2 == 0 else "buffer_store_short_d16_hi"
                k(f"{op} v{reg}, v20, s[24:27], s56 offen offset:{(8*ip+r)*16}")
        for j in range(4): k(f"v_dot2c_f32_bf16 v8, v{P+j}, v{P+j}")
        k(f"v_permlane32_swap_b32 v{P}, v{P+2}")
        k(f"v_permlane32_swap_b32 v{P+1}, v{P+3}")
        k("v_lshlrev_b32 v21, 4, v2")
        k("v_mov_b32 v9, v8")
        k(f"buffer_store_dwordx4 {vr(P,4)}, v21, s[24:27], s56 offen")
        k("s_nop 0")
        k("v_permlane32_swap_b32 v8, v9")
        k("v_add_f32 v8, v8, v9")
        k("s_branch L_qkv_kv2")
        k.lab("L_qkv_kv1")
        k(f"v_dot2c_f32_bf16 v8, v{P}, v{P}")
        k("v_lshlrev_b32 v21, 2, v3")
        k("v_mov_b32 v22, 0x3f80")
        k("s_mov_b32 exec_hi, 0")
        k(f"buffer_store_dword v{P}, v21, s[24:27], s56 offen offset:1024")
        k(f"buffer_store_short v{P+4}, v20, s[24:27], s56 offen offset:256")
        k(f"buffer_store_short_d16_hi v{P+4}, v20, s[24:27], s56 offen offset:272")
        k(f"buffer_store_short v22, v20, s[24:27], s56 offen offset:288")
        k("s_mov_b64 exec, -1")
        k.lab("L_qkv_kv2")
        k.nop(3)
        for sh in (1, 2, 4, 8):
            k(f"v_max_f32_dpp v8, v8, v8 row_ror:{sh} row_mask:0xf bank_mask:0xf")
            k.nop(2)
        k("v_readlane_b32 s60, v8, 0")
        k("v_readlane_b32 s61, v8, 16")
        k.nop(2)
        k("s_max_u32 s60, s60, s61")
        k("v_mov_b32 v8, s60")
        k("v_mov_b32 v9, 0")
        k("s_mov_b64 exec, 1")
        k("buffer_store_dword v8, v9, s[24:27], s57 offen")
        k("s_mov_b64 exec, -1")
        k.lab("L_qkv_done")
    stamp_end(k, 0 if qkv else 2, 24)
    k.lab(f"L_{mode}_end")
    k("s_endpgm")
    lds = RED + 4 * 6144
    return k, 32 * nsl, 256, lds

def attn(prefetch=True):
    k = Kern("attn_kernel", vgpr=128, sgpr=96)
    QM, QX = 8, 12
    KX = [14, 16]
    KM = [20, 24]
    VF = [28, 36]
    SB = [48, 64]
    PB = 80
    O = 96
    DUM = 112
    k("s_cmp_ge_u32 s2, 256")
    k("s_cbranch_scc1 L_attn_end")
    stamp_begin(k)
    k("s_load_dwordx2 s[32:33], s[0:1], 96")
    k("s_load_dwordx2 s[4:5], s[0:1], 32")
    k("s_load_dwordx2 s[6:7], s[0:1], 48")
    k("s_load_dwordx2 s[28:29], s[0:1], 64")
    k("s_and_b32 s34, s2, 7")
    k("s_lshr_b32 s35, s2, 3")
    k("s_lshr_b32 s36, s35, 3")
    k("s_lshl_b32 s36, s36, 3")
    k("s_add_u32 s36, s36, s34")
    k("s_bfe_u32 s37, s35, 0x10002")
    k("s_lshl_b32 s45, s36, 1")
    k("s_add_u32 s45, s45, s37")
    k("s_and_b32 s39, s35, 3")
    k("v_lshrrev_b32 v1, 6, v0")
    k("v_and_b32 v2, 63, v0")
    k("v_readfirstlane_b32 s38, v1")
    k("v_and_b32 v3, 31, v2")
    k("v_lshrrev_b32 v4, 5, v2")
    k("s_lshl_b32 s40, s39, 3")
    k("s_add_u32 s40, s40, s38")
    k("s_mov_b32 s46, 1152")
    k("v_mul_lo_u32 v5, v3, s46")
    k("v_lshl_add_u32 v6, v4, 4, v5")
    k("s_mul_i32 s47, s45, 36864")
    k("s_mul_i32 s48, s40, 36")
    k("s_add_u32 s47, s47, s48")
    k("v_lshlrev_b32 v7, 4, v2")
    k("v_lshlrev_b32 v44, 3, v2")
    k("s_waitcnt lgkmcnt(0)")
    srd(k, 24, 32, 33, WS_END)
    k(f"s_add_u32 s8, s32, {WS_KV}")
    k("s_addc_u32 s9, s33, 0")
    k(f"s_mov_b32 s10, {64*KVT}")
    k(f"s_mov_b32 s11, {FMT}")
    k(f"buffer_load_dwordx4 {vr(QM,4)}, v6, s[24:27], s47 offen")
    k(f"buffer_load_dword v{QX}, v5, s[24:27], s47 offen offset:32")
    k(f"s_mov_b32 s49, {WS_KMAX}")
    k("buffer_load_dwordx2 v[46:47], v44, s[24:27], s49 offen")
    k("s_lshl_b32 s50, s38, 10")
    for j in range(19):
        k("s_mov_b32 m0, s50")
        k("s_nop 0")
        k("buffer_load_dwordx4 v7, s[8:11], s50 offen lds")
        if j < 18: k("s_add_u32 s50, s50, 8192")
    npf = 0
    if prefetch:
        srd(k, 12, 4, 5, 576*576*2)
        srd(k, 16, 6, 7, 576*4608*2)
        srd(k, 20, 28, 29, 576*4608*2)
        k("s_lshl_b32 s51, s35, 3")
        k("s_add_u32 s51, s51, s38")
        k("s_mul_i32 s52, s51, 2592")
        for o in (0, 1024, 2048):
            k(f"buffer_load_dwordx4 {vr(DUM,4)}, v7, s[12:15], s52 offen offset:{o} ; nowait")
        k(f"s_mul_i32 s53, s34, {576*1152}")
        k("s_add_u32 s53, s53, s52")
        for o in (0, 1024, 2048):
            k(f"buffer_load_dwordx4 {vr(DUM,4)}, v7, s[20:23], s53 offen offset:{o} ; nowait")
        k("s_mul_i32 s54, s51, 21")
        k("v_min_u32 v45, 20, v2")
        k("v_add_u32 v45, s54, v45")
        k("v_min_u32 v45, 5183, v45")
        k("s_mov_b32 s55, 7282")
        k("v_mul_lo_u32 v116, v45, s55")
        k("v_lshrrev_b32 v116, 16, v116")
        k("v_mul_u32_u24 v117, 9, v116")
        k("v_sub_u32 v117, v45, v117")
        k("s_mov_b32 s55, 9216")
        k("v_mul_lo_u32 v116, v116, s55")
        k("v_lshl_add_u32 v116, v117, 7, v116")
        k("s_mul_i32 s54, s34, 1152")
        k(f"buffer_load_dword v{DUM}, v116, s[16:19], s54 offen ; nowait")
        k(f"buffer_load_dword v{DUM}, v116, s[16:19], s54 offen offset:64 ; nowait")
        npf = 8
    k("v_mov_b32 v1, v7")
    k("v_lshlrev_b32 v2, 2, v3")
    k("v_add_u32 v2, 1024, v2")
    k("v_mov_b32 v45, v3")
    k("v_cmp_lt_u32 vcc, 18, v3")
    k("v_mov_b32 v44, 4")
    k("s_nop 0")
    k("v_cndmask_b32 v45, v45, v44, vcc")
    k("v_subrev_u32 v44, 20, v3")
    k("v_cmp_gt_u32 vcc, 8, v44")
    k("v_mov_b32 v44, 0")
    k("s_nop 0")
    k("v_cndmask_b32 v45, v45, v44, vcc")
    k("v_cmp_eq_u32 vcc, 22, v3")
    k("v_mov_b32 v44, 18")
    k("s_nop 0")
    k("v_cndmask_b32 v45, v45, v44, vcc")
    k("v_mul_u32_u24 v44, 19, v4")
    k("v_add_u32 v45, v45, v44")
    k("v_lshlrev_b32 v45, 4, v45")
    k("v_add_u32 v3, 1152, v45")
    k(f"v_mov_b32 v{KX[0]+1}, 0x3f803f80")
    k(f"v_mov_b32 v{KX[1]+1}, 0x3f803f80")
    k("v_mov_b32 v118, v1"); k("v_mov_b32 v119, v2"); k("v_mov_b32 v120, v3")
    k(f"s_waitcnt vmcnt({19+npf})")
    k("v_cmp_eq_u32 vcc, 0, v4")
    k("v_mov_b32 v44, 0")
    k("s_mov_b64 s[60:61], vcc")
    k(f"v_cndmask_b32 v{QX}, v44, v{QX}, vcc")
    for j in range(4): k(f"v_dot2c_f32_bf16 v44, v{QM+j}, v{QM+j}")
    k(f"v_dot2c_f32_bf16 v44, v{QX}, v{QX}")
    for sh in (1, 2, 4, 8):
        k(f"v_max_f32_dpp v46, v46, v46 row_ror:{sh} row_mask:0xf bank_mask:0xf")
        k(f"v_max_f32_dpp v47, v47, v47 row_ror:{sh} row_mask:0xf bank_mask:0xf")
        k("s_nop 0")
    k("v_mov_b32 v45, v44")
    k("s_nop 0")
    for i, ln in enumerate((0, 16, 32, 48)):
        k(f"v_readlane_b32 s{62+i}, v46, {ln}")
        k(f"v_readlane_b32 s{66+i}, v47, {ln}")
    k("v_permlane32_swap_b32 v44, v45")
    k("v_add_f32 v44, v44, v45")
    k("s_max_u32 s62, s62, s63"); k("s_max_u32 s64, s64, s65"); k("s_max_u32 s62, s62, s64")
    k("s_max_u32 s66, s66, s67"); k("s_max_u32 s68, s68, s69"); k("s_max_u32 s66, s66, s68")
    k("v_mov_b32 v45, s62")
    k("v_add_f32 v45, s66, v45")
    k("v_mul_f32 v44, v44, v45")
    k("v_sqrt_f32 v44, v44")
    k("s_nop 0")
    k(f"v_mul_f32 v44, {f32(-1.02)}, v44")
    k("s_mov_b32 s70, 0")
    k.lab("L_attn_setshift")
    k("v_and_b32 v45, 0xffff0000, v44")
    k("v_sub_f32 v46, v44, v45")
    k("v_and_b32 v47, 0xffff0000, v46")
    k("v_sub_f32 v46, v46, v47")
    k("v_lshrrev_b32 v45, 16, v45")
    k("v_or_b32 v45, v45, v47")
    k("v_lshrrev_b32 v46, 16, v46")
    k(f"v_cndmask_b32 v{QX+1}, v46, v45, s[60:61]")
    for j in range(16): k(f"v_mov_b32 v{O+j}, 0")
    k("v_mov_b32 v1, v118"); k("v_mov_b32 v2, v119"); k("v_mov_b32 v3, v120")
    k("s_cmp_eq_u32 s70, 0")
    k("s_cbranch_scc0 L_attn_nobar0")
    k(f"s_waitcnt vmcnt({16+npf})")
    k("s_barrier")
    k.lab("L_attn_nobar0")
    def rdK(t, off):
        k(f"ds_read_b128 {vr(KM[t%2],4)}, v1 offset:{off}")
        k(f"ds_read_b32 v{KX[t%2]}, v2 offset:{off}")
    def rdV(t, off):
        k(f"ds_read_b128 {vr(VF[t%2],4)}, v3 offset:{off}")
        k(f"ds_read_b128 {vr(VF[t%2]+4,4)}, v3 offset:{off+608}")
    def qk0(t): k(f"v_mfma_f32_32x32x8_bf16 {vr(SB[t%2],16)}, {vr(KX[t%2],2)}, {vr(QX,2)}, 0")
    def qk1(t): k(f"v_mfma_f32_32x32x16_bf16 {vr(SB[t%2],16)}, {vr(KM[t%2],4)}, {vr(QM,4)}, {vr(SB[t%2],16)}")
    def pv(t, s): k(f"v_mfma_f32_32x32x16_bf16 {vr(O,16)}, {vr(VF[t%2]+4*s,4)}, {vr(PB+4*s,4)}, {vr(O,16)}")
    rdK(0, 0); rdV(0, 0); rdK(1, KVT)
    k("s_waitcnt lgkmcnt(4)")
    qk0(0); qk1(0)
    k("s_mov_b32 s71, 0")
    k.nop(10)
    k(".p2align 6")
    k.lab("L_attn_loop")
    U = 8
    for t in range(U):
        S = SB[t % 2]
        ex = lambda j: k(f"v_exp_f32 v{S+j}, v{S+j}")
        cv = lambda j: k(f"v_cvt_pk_bf16_f32 v{PB+j}, v{S+2*j}, v{S+2*j+1}")
        k("s_waitcnt lgkmcnt(0)")
        qk0(t + 1)
        ex(0); ex(1); ex(2); ex(3)
        qk1(t + 1)
        rdK(t + 2, (t + 2) * KVT)
        ex(4); cv(0); ex(5); cv(1); ex(6); ex(7); cv(2); ex(8); cv(3); ex(9); ex(10)
        pv(t, 0)
        rdV(t + 1, (t + 1) * KVT)
        ex(11); cv(4); ex(12); ex(13); cv(5); ex(14); ex(15); cv(6)
        if t == U - 1:
            k(f"v_add_u32 v1, {U*KVT}, v1")
            cv(7)
            k(f"v_add_u32 v2, {U*KVT}, v2")
            k(f"v_add_u32 v3, {U*KVT}, v3")
        else:
            k("s_nop 0")
            cv(7)
            k("s_nop 1")
        pv(t, 1)
    k("s_add_u32 s71, s71, 1")
    k("s_or_b32 s72, s70, s71")
    k("s_cmp_eq_u32 s72, 1")
    k("s_cbranch_scc0 L_attn_nobar1")
    k(f"s_waitcnt vmcnt({npf})")
    k("s_barrier")
    k.lab("L_attn_nobar1")
    k(f"s_cmp_lt_u32 s71, {64//U}")
    k("s_cbranch_scc1 L_attn_loop")
    k("s_waitcnt lgkmcnt(0)")
    k.nop(12)
    k("s_cmp_eq_u32 s70, 0")
    k("s_cbranch_scc0 L_attn_fin")
    k(f"v_cmp_nle_f32 vcc, {f32(2.0**-64)}, v{O+10}")
    k("s_nop 1")
    k("s_cmp_eq_u64 vcc, 0")
    k("s_cbranch_scc1 L_attn_fin")
    k("s_mov_b32 s70, 256")
    k(f"v_mov_b32 v{QX+1}, 0")
    k("v_mov_b32 v1, v118"); k("v_mov_b32 v2, v119")
    k("v_mov_b32 v44, 0xff800000")
    k("s_mov_b32 s71, 0")
    k.lab("L_attn_maxloop")
    rdK(0, 0)
    k(f"v_add_u32 v1, {KVT}, v1")
    k(f"v_add_u32 v2, {KVT}, v2")
    k("s_waitcnt lgkmcnt(0)")
    qk0(0); qk1(0)
    k.nop(16)
    for j in range(8): k(f"v_max3_f32 v44, v44, v{SB[0]+2*j}, v{SB[0]+2*j+1}")
    k("s_add_u32 s71, s71, 1")
    k("s_cmp_lt_u32 s71, 64")
    k("s_cbranch_scc1 L_attn_maxloop")
    k("v_mov_b32 v45, v44")
    k.nop(2)
    k("v_permlane32_swap_b32 v44, v45")
    k("v_max_f32 v44, v44, v45")
    k("v_sub_f32 v44, 0, v44")
    k("s_branch L_attn_setshift ; nocheck")
    k.lab("L_attn_fin")
    k(f"v_rcp_f32 v44, v{O+10}")
    k("s_mul_i32 s47, s45, 36864")
    k(f"s_add_u32 s47, s47, {WS_O}")
    k("s_lshl_b32 s48, s40, 10")
    k("s_add_u32 s48, s48, s47")
    for j in range(10): k(f"v_mul_f32 v{O+j}, v{O+j}, v44")
    for j in range(5): k(f"v_cvt_pk_bf16_f32 v{PB+j}, v{O+2*j}, v{O+2*j+1}")
    k(f"buffer_store_dwordx4 {vr(PB,4)}, v7, s[24:27], s48 offen")
    k("s_lshl_b32 s48, s39, 10")
    k("s_add_u32 s48, s48, s47")
    k("s_add_u32 s48, s48, 32768")
    k("s_lshr_b32 s49, s38, 2")
    k("s_lshl_b32 s49, s49, 9")
    k("s_add_u32 s48, s48, s49")
    k("s_and_b32 s49, s38, 3")
    k("s_lshl_b32 s49, s49, 2")
    k("s_add_u32 s48, s48, s49")
    k("s_mov_b32 exec_hi, 0")
    k(f"buffer_store_dword v{PB+4}, v7, s[24:27], s48 offen")
    k("s_mov_b64 exec, -1")
    stamp_end(k, 1, 24)
    k.lab("L_attn_end")
    k("s_endpgm")
    return k, 256, 512, 66 * KVT + 1024

class DSQ:
    def __init__(self, k): self.k = k; self.q = []
    def issue(self, text, tag): self.k(text); self.q.append(tag)
    def need(self, tag):
        if tag not in self.q: return
        last = len(self.q) - 1 - self.q[::-1].index(tag)
        n = len(self.q) - 1 - last
        self.k(f"s_waitcnt lgkmcnt({min(n, 15)})")
        self.q = self.q[len(self.q) - min(n, 15):] if n else []
    def drain(self):
        self.k("s_waitcnt lgkmcnt(0)"); self.q = []

def ffn(store_flags=""):
    k = Kern("ffn_kernel", vgpr=256, agpr=176, sgpr=96)
    HF = 112; ACC = [80, 96]; PK = 64; TR = 48
    AB = 40
    VD = 44
    VB = 46; XW = 47; XR = 39; BA = 36; BB = 34; VS = 33
    HN = 0; AF = 144; NB = 8; PD = 5
    SLOT = 36864
    XB = 4 * SLOT
    BT = XB + 8192
    ST = BT + 2048
    LDS = ST + 1024
    WBYTES = 576 * 4608 * 2
    k("s_cmp_ge_u32 s2, 256")
    k("s_cbranch_scc1 L_ffn_end")
    stamp_begin(k)
    k("s_load_dwordx4 s[4:7], s[0:1], 48")
    k("s_load_dwordx2 s[28:29], s[0:1], 64")
    k("s_load_dwordx2 s[32:33], s[0:1], 96")
    k("s_and_b32 s34, s2, 7")
    k("s_lshr_b32 s36, s2, 3")
    k("v_lshrrev_b32 v1, 6, v0")
    k("v_and_b32 v2, 63, v0")
    k("v_readfirstlane_b32 s38, v1")
    k("v_and_b32 v3, 31, v2")
    k("v_lshrrev_b32 v4, 5, v2")
    k(f"v_lshlrev_b32 v{VS}, 4, v2")
    k("s_and_b32 s39, s38, 1")
    k("s_lshr_b32 s40, s38, 1")
    k("s_lshl_b32 s45, s36, 1")
    k("s_add_u32 s45, s45, s39")
    k("s_mul_i32 s47, s45, 36864")
    k("s_mul_i32 s48, s40, 18432")
    k("s_add_u32 s49, s47, s48")
    k(f"s_add_u32 s49, s49, {WS_H}")
    k("v_lshrrev_b32 v5, 3, v2")
    k("v_and_b32 v6, 7, v2")
    k("v_bfe_u32 v7, v2, 4, 1")
    k("v_lshlrev_b32 v7, 2, v7")
    k("v_xor_b32 v6, v6, v7")
    k("v_lshlrev_b32 v6, 4, v6")
    k("s_mov_b32 s50, 9216")
    k(f"v_mul_lo_u32 v{VD}, v5, s50")
    k(f"v_add_u32 v{VD}, v{VD}, v6")
    k(f"v_mul_u32_u24 v{VD+1}, 1152, v5")
    k(f"v_add_u32 v{VD+1}, v{VD+1}, v6")
    k("s_waitcnt lgkmcnt(0)")
    srd(k, 24, 32, 33, WS_END)
    srd(k, 12, 4, 5, WBYTES)
    srd(k, 16, 6, 7, 4608 * 2)
    for s in range(18):
        if s % 4 == 0 and s: k("s_add_u32 s49, s49, 4096")
        k(f"buffer_load_dwordx4 {vr(HF+4*s,4)}, v{VS}, s[24:27], s49 offen offset:{1024*(s%4)}")
    k(f"s_mul_i32 s43, s38, {72*9216}")
    k("s_mul_i32 s54, s34, 1152")
    k("s_add_u32 s43, s43, s54")
    k("s_mul_i32 s44, s38, 9216")
    k(f"s_mov_b32 s51, {8*9216}")
    k(f"s_mov_b32 s52, {(288-64)*9216}")
    k(f"s_mov_b32 s53, {(-(288+64)*9216 + 128) & 0xffffffff}")
    def dma(slot, e):
        pos = slot % 4
        k(f"s_add_u32 m0, s44, {pos*SLOT + e*1024}")
        if e == 0: k("s_nop 0")
        else: k("s_add_u32 s43, s43, s51")
        k(f"buffer_load_dwordx4 v{VD}, s[12:15], s43 offen lds ; dma=r{pos}")
        if e == 8: k(f"s_add_u32 s43, s43, s{52 if slot % 2 == 0 else 53}")
    k("s_lshl_b32 s55, s39, 10")
    k(f"s_add_u32 m0, s55, {BT}")
    k("s_add_u32 s55, s55, s54")
    k(f"buffer_load_dwordx4 v{VS}, s[16:19], s55 offen lds ; dma=bt")
    for e in range(9): dma(0, e)
    for e in range(9): dma(1, e)
    k("v_bfe_u32 v5, v2, 2, 2")
    k("v_lshl_add_u32 v6, v4, 2, v5")
    k("v_lshlrev_b32 v6, 7, v6")
    k("v_lshrrev_b32 v5, 1, v5")
    k("v_xor_b32 v5, s40, v5")
    k("v_lshl_add_u32 v6, v5, 6, v6")
    k("v_bfe_u32 v5, v2, 4, 1")
    k("v_lshl_add_u32 v6, v5, 5, v6")
    k("v_and_b32 v5, 3, v2")
    k(f"v_lshl_add_u32 v{AB}, v5, 3, v6")
    for p in range(1, 4): k(f"v_add_u32 v{AB+p}, {p*SLOT}, v{AB}")
    k("s_lshl_b32 s55, s40, 6")
    k(f"s_add_u32 s55, s55, {BT}")
    k(f"v_lshl_add_u32 v{VB}, v3, 1, s55")
    k("s_lshl_b32 s55, s39, 12")
    k(f"s_add_u32 s55, s55, {XB}")
    k(f"v_add_u32 v{XR}, s55, v{VS}")
    k("s_lshl_b32 s56, s40, 11")
    k(f"v_add_u32 v{XW}, s56, v{XR}")
    k(f"v_mov_b32 v{BA+1}, 0")
    k(f"v_mov_b32 v{BB+1}, 0")
    k("v_cmp_eq_u32 vcc, 0, v4")
    k("v_mov_b32 v5, 0x3f80")
    k("s_nop 0")
    k(f"v_cndmask_b32 v{BB}, v{BB+1}, v5, vcc")
    k("v_mov_b32 v8, 0"); k("v_mov_b32 v9, 0"); k("v_mov_b32 v10, 0"); k("v_mov_b32 v11, 0")
    k("s_mov_b32 s58, 0x3f803f80")
    for s in range(18):
        k(f"s_waitcnt vmcnt({19 + 17 - s})")
        for j in range(4):
            r = HF + 4 * s + j
            k(f"v_dot2c_f32_bf16 v{8 + (j&1)}, s58, v{r}")
            k(f"v_dot2c_f32_bf16 v{10 + (j&1)}, v{r}, v{r}")
    k.nop(3)
    k("v_add_f32 v8, v8, v9")
    k("v_add_f32 v10, v10, v11")
    k("v_mov_b32 v9, v8"); k("v_mov_b32 v11, v10")
    k.nop(2)
    k("v_permlane32_swap_b32 v8, v9")
    k("v_permlane32_swap_b32 v10, v11")
    k("v_add_f32 v8, v8, v9")
    k("v_add_f32 v9, v10, v11")
    k("s_lshl_b32 s59, s38, 8")
    k(f"s_add_u32 s59, s59, {ST}")
    k("v_lshl_add_u32 v12, v3, 3, s59")
    k("ds_write_b64 v12, v[8:9]")
    k("v_xor_b32 v12, 512, v12")
    k("s_waitcnt lgkmcnt(0)")
    k("s_barrier")
    k("ds_read_b64 v[10:11], v12")
    k(f"s_mul_i32 s59, s39, {SLOT}")
    k(f"s_add_u32 s59, s59, {2*SLOT}")
    k(f"v_add_u32 v18, s59, v{VS}")
    k("v_add_u32 v19, s48, v18")
    k("s_waitcnt lgkmcnt(0)")
    k("v_add_f32 v8, v8, v10")
    k("v_add_f32 v9, v9, v11")
    k(f"v_mul_f32 v8, {f32(1/576)}, v8")
    k(f"v_mul_f32 v9, {f32(1/576)}, v9")
    k("v_fma_f32 v9, -v8, v8, v9")
    k("v_max_f32 v9, 0, v9")
    k(f"v_add_f32 v9, {f32(EPS)}, v9")
    k("v_rsq_f32 v10, v9")
    k("s_mov_b32 s58, 0xffff0000")
    k("v_mul_f32 v12, v8, v10")
    k("v_sub_f32 v12, 0, v12")
    for s in range(18):
        for j in range(4):
            r = HF + 4 * s + j
            tt = 14 + 2 * (j & 1)
            k(f"v_lshlrev_b32 v{tt}, 16, v{r}")
            k(f"v_and_b32 v{tt+1}, s58, v{r}")
            k(f"v_pk_fma_f32 {vr(tt,2)}, {vr(tt,2)}, v[10:11], v[12:13] op_sel_hi:[1,0,0]")
            k(f"v_cvt_pk_bf16_f32 v{r}, v{tt}, v{tt+1}")
        k(f"ds_write_b128 v19, {vr(HF+4*s,4)} offset:{1024*s}")
    k("s_waitcnt lgkmcnt(0)")
    k("s_barrier")
    for s in range(36):
        k(f"ds_read_b128 {ar(HN+4*s,4)}, v18 offset:{1024*s}")
    k("s_waitcnt vmcnt(0) lgkmcnt(0)")
    k("s_barrier ; need=r0,r1,bt")
    for e in range(9): dma(2, e)
    k(f"s_mul_i32 s60, s34, {ACT}")
    k("s_add_u32 s60, s60, s47")
    k("s_add_u32 s60, s60, s56")
    k(f"s_add_u32 s60, s60, {WS_P}")
    k(f"s_mov_b32 s61, 0")
    q = DSQ(k)
    cnt = [0]
    def rdA(g):
        slot, i = divmod(g, 18)
        b = AF + 4 * (g % NB)
        q.issue(f"ds_read_b64_tr_b16 {ar(b,2)}, v{AB + slot % 4} offset:{i*2048}", f"A{g%NB}")
        q.issue(f"ds_read_b64_tr_b16 {ar(b+2,2)}, v{AB + slot % 4} offset:{i*2048+1024}", f"A{g%NB}")
    q.issue(f"ds_read_u16 v{BA}, v{VB}", "bias")
    for g in range(PD): rdA(g)

    def step(s, first=False, vm=9, extras=None, tail=None, last=False):
        extras = extras or {}
        phase2 = s >= 18
        tile, u = divmod(s, 2)
        acc = ACC[tile % 2]
        if not first:
            k(f"s_waitcnt vmcnt({vm})")
            k(f"s_barrier ; need=r{(s+1)%4}")
        if u == 0 and not phase2:
            q.need("bias")
            k(f"v_mfma_f32_32x32x8_bf16 {vr(acc,16)}, {vr(BA,2)}, {vr(BB,2)}, 0")
        for i in range(18):
            g = 18 * s + i
            if not (last and i + PD >= 18): rdA(g + PD)
            if i % 2 == 0: q.need(f"A{(g+1)%NB}")
            ks = 18 * u + i
            B = vr(HF + 4 * ks, 4) if phase2 else ar(HN + 4 * ks, 4)
            C = "0" if (phase2 and u == 0 and i == 0) else vr(acc, 16)
            k(f"v_mfma_f32_32x32x16_bf16 {vr(acc,16)}, {ar(AF+4*(g%NB),4)}, {B}, {C}")
            if i % 2 == 1: dma(s + 3, i // 2)
            for f in extras.get(i, []): f()
        q.need("xw")
        if tail: tail()

    def spread(ops, start, per):
        d = {}
        for n, o in enumerate(ops):
            d.setdefault(start + n // per, []).append(o)
        return d
    def merge(*ds):
        o = {}
        for d in ds:
            for kk, v in d.items(): o.setdefault(kk, []).extend(v)
        return o
    def I(text): return lambda: k(text)
    def h_epilogue(acc):
        ops = []
        for j in range(8):
            a, b = acc + 2 * j, acc + 2 * j + 1
            ops += [I(f"v_max_f32 v{a}, 0, v{a}"), I(f"v_max_f32 v{b}, 0, v{b}"),
                    I(f"v_mul_f32 v{a}, v{a}, v{a}"), I(f"v_mul_f32 v{b}, v{b}, v{b}"),
                    I(f"v_cvt_pk_bf16_f32 v{PK+j}, v{a}, v{b}")]
            if j % 4 == 3:
                hh = j // 4
                ops.append(lambda hh=hh: q.issue(f"ds_write_b128 v{XW}, {vr(PK+4*hh,4)} offset:{1024*hh}", "xw"))
        return spread(ops, 2, 3)
    def bias_next():
        return {12: [I(f"v_add_u32 v{VB}, 128, v{VB}")], 13: [lambda: q.issue(f"ds_read_u16 v{BA}, v{VB}", "bias")]}
    def xread(dst):
        d = {}
        for n in range(4):
            d.setdefault(n, []).append(lambda n=n: q.issue(f"ds_read_b128 {vr(dst+4*n,4)}, v{XR} offset:{1024*n}", f"xr{n}"))
        return d
    def xmove():
        d = {}
        for n in range(4):
            def f(n=n):
                q.need(f"xr{n}")
                k("s_set_gpr_idx_on s61, gpr_idx(DST)")
                for j in range(4): k(f"v_mov_b32 v{HF+4*n+j}, v{TR+4*n+j}")
                k("s_set_gpr_idx_off")
            d[8 + 2 * n] = [f]
        d[16] = [I("s_add_u32 s61, s61, 16")]
        return d
    def p_epilogue(acc):
        ops = [I(f"v_cvt_pk_bf16_f32 v{PK+j}, v{acc+2*j}, v{acc+2*j+1}") for j in range(8)]
        return spread(ops, 6, 1)
    def p_store():
        k(f"buffer_store_dwordx4 {vr(PK,4)}, v{VS}, s[24:27], s60 offen {store_flags}")
        k(f"buffer_store_dwordx4 {vr(PK+4,4)}, v{VS}, s[24:27], s60 offen offset:1024 {store_flags}")
        k("s_add_u32 s60, s60, 4096")

    step(0, first=True)
    step(1, extras=bias_next())
    k("s_mov_b32 s62, 0")
    shape0 = list(q.q)
    k.lab("L_ffn_p1")
    def switch_w2():
        k("s_cmp_eq_u32 s62, 3")
        k("s_cbranch_scc0 L_ffn_nosw")
        k("s_mov_b32 s12, s28"); k("s_mov_b32 s13, s29")
        k(f"v_mov_b32 v{VD}, v{VD+1}")
        k(f"s_mul_i32 s43, s34, {576*1152}")
        k(f"s_mul_i32 s54, s38, {72*1152}")
        k("s_add_u32 s43, s43, s54")
        k(f"s_mov_b32 s51, {8*1152}")
        k(f"s_mov_b32 s52, {(288-64)*1152}")
        k(f"s_mov_b32 s53, {(-(288+64)*1152 + 128) & 0xffffffff}")
        k.lab("L_ffn_nosw")
    step(2, extras=h_epilogue(ACC[0]), tail=switch_w2)
    step(3, extras=merge(xread(TR), xmove(), bias_next()))
    step(4, extras=h_epilogue(ACC[1]))
    step(5, extras=merge(xread(TR), xmove(), bias_next()))
    assert q.q == shape0, (q.q, shape0)
    k("s_add_u32 s62, s62, 1")
    k("s_cmp_lt_u32 s62, 4")
    k("s_cbranch_scc1 L_ffn_p1")
    def dummy2():
        k(f"buffer_load_dword v20, v{VS}, s[16:19], 0 offen ; nowait")
        k(f"buffer_load_dword v20, v{VS}, s[16:19], 0 offen ; nowait")
    step(18, extras=h_epilogue(ACC[0]), tail=dummy2)
    step(19, vm=11, extras=merge(xread(HF + 128), {12: [lambda: q.need("xr3")]}))
    k("s_mov_b32 s62, 0")
    shape1 = list(q.q)
    k.lab("L_ffn_p2")
    def tail20():
        p_store()
        k("s_cmp_eq_u32 s62, 3")
        k("s_cselect_b32 s14, 0, s14")
    step(20, vm=11, extras=p_epilogue(ACC[1]), tail=tail20)
    step(21, vm=11)
    step(22, vm=11, extras=p_epilogue(ACC[0]), tail=p_store)
    step(23, vm=11)
    assert q.q == shape1, (q.q, shape1)
    k("s_add_u32 s62, s62, 1")
    k("s_cmp_lt_u32 s62, 4")
    k("s_cbranch_scc1 L_ffn_p2")
    k.nop(10)
    for j in range(8): k(f"v_cvt_pk_bf16_f32 v{PK+j}, v{ACC[1]+2*j}, v{ACC[1]+2*j+1}")
    p_store()
    k("s_waitcnt vmcnt(0) lgkmcnt(0)")
    stamp_end(k, 3, 24)
    k.lab("L_ffn_end")
    k("s_endpgm")
    return k, 256, 256, LDS

def reduce_k():
    k = Kern("red_kernel", vgpr=64, sgpr=96)
    k("s_cmp_ge_u32 s2, 576")
    k("s_cbranch_scc1 L_red_end")
    stamp_begin(k)
    k("s_load_dwordx4 s[4:7], s[0:1], 72")
    k("s_load_dwordx2 s[32:33], s[0:1], 96")
    k("v_lshrrev_b32 v1, 6, v0")
    k("v_and_b32 v2, 63, v0")
    k("v_readfirstlane_b32 s38, v1")
    k("v_and_b32 v3, 31, v2")
    k("v_lshrrev_b32 v4, 5, v2")
    k("v_lshlrev_b32 v5, 4, v0")
    k("s_mul_i32 s40, s2, 7282")
    k("s_lshr_b32 s40, s40, 16")
    k("s_mul_i32 s41, s40, 9")
    k("s_sub_u32 s41, s2, s41")
    k("s_lshl_b32 s41, s41, 2")
    k("s_add_u32 s41, s41, s38")
    k("s_lshl_b32 s42, s2, 12")
    k(f"s_add_u32 s43, s42, {WS_H}")
    k(f"s_add_u32 s42, s42, {WS_P}")
    k("v_lshlrev_b32 v6, 3, v4")
    k("s_lshl_b32 s44, s41, 5")
    k("s_mov_b32 s46, 1152")
    k("v_mul_lo_u32 v7, v3, s46")
    k("v_lshl_add_u32 v7, v4, 4, v7")
    k("s_mul_i32 s45, s40, 36864")
    k("s_add_u32 s45, s45, s44")
    k("s_waitcnt lgkmcnt(0)")
    srd(k, 24, 32, 33, WS_END)
    srd(k, 8, 4, 5, 1152)
    srd(k, 12, 6, 7, ACT)
    for j in range(8):
        k(f"buffer_load_dwordx4 {vr(16+4*j,4)}, v5, s[24:27], s42 offen")
        if j < 7: k(f"s_add_u32 s42, s42, {ACT}")
    k("buffer_load_dwordx4 v[48:51], v5, s[24:27], s43 offen")
    k("buffer_load_dwordx2 v[52:53], v6, s[8:11], s44 offen")
    k("buffer_load_dwordx2 v[54:55], v6, s[8:11], s44 offen offset:16")
    k("s_mov_b32 s58, 0xffff0000")
    for j in range(10):
        k(f"s_waitcnt vmcnt({max(10-j, 0) if j < 9 else 0})")
        for d in range(4):
            r = 16 + 4 * j + d
            if j == 0:
                k(f"v_lshlrev_b32 v{8+2*d}, 16, v{r}")
                k(f"v_and_b32 v{9+2*d}, s58, v{r}")
            else:
                k(f"v_lshlrev_b32 v56, 16, v{r}")
                k(f"v_and_b32 v57, s58, v{r}")
                k(f"v_add_f32 v{8+2*d}, v{8+2*d}, v56")
                k(f"v_add_f32 v{9+2*d}, v{9+2*d}, v57")
    for d in range(4): k(f"v_cvt_pk_bf16_f32 v{16+d}, v{8+2*d}, v{9+2*d}")
    k.nop(2)
    k("v_permlane32_swap_b32 v16, v18")
    k("v_permlane32_swap_b32 v17, v19")
    k("buffer_store_dwordx4 v[16:19], v7, s[12:15], s45 offen")
    stamp_end(k, 4, 24)
    k.lab("L_red_end")
    k("s_endpgm")
    return k, 576, 256, 0

HEADER = open("cdna_kernels/" + NAME + ".s.ref").read().split("; Override")[0]

def build(path, stamps=False, spin=False, **opt):
    global STAMPS
    STAMPS = stamps
    ks = [gemm3("qkv"), attn(prefetch=opt.get("prefetch", True)), gemm3("wo"), ffn(opt.get("store_flags", "")), reduce_k()]
    bad = 0
    for k, g, b, lds in ks:
        for p in check(k): print("HAZARD", p); bad += 1
    out = HEADER
    if spin:
        out += "; @launch kernel=spin_kernel grid=(1,1,1) block=(64,1,1) lds=0\n"
    for k, g, b, lds in ks:
        out += f"; @launch kernel={k.name} grid=({g},1,1) block=({b},1,1) lds={lds}\n"
    out += '.amdgcn_target "amdgcn-amd-amdhsa--gfx950"\n'
    if spin:
        s = Kern("spin_kernel", vgpr=8, sgpr=32)
        s("s_memrealtime s[12:13]\ns_waitcnt lgkmcnt(0)\ns_add_u32 s20, s12, 20000")
        s.lab("L_spin")
        s("s_memrealtime s[14:15]\ns_waitcnt lgkmcnt(0)\ns_sub_u32 s21, s14, s20\ns_cmp_lt_i32 s21, 0\ns_cbranch_scc1 L_spin\ns_endpgm")
        out += s.text()
    for k, g, b, lds in ks: out += k.text()
    open(path, "w").write(out)
    return bad

if __name__ == "__main__":
    bad = build("cdna_kernels/" + NAME + ".s")
    build("dbg.s", stamps=True, spin=True)
    print("hazards:", bad)
```
